```python
import torch

def _softmax(x, axis=-1):
    return torch.softmax(x, dim=axis)
def _gelu(x):
    return torch.nn.functional.gelu(x, approximate="tanh")
def _silu(x):
    return torch.nn.functional.silu(x)
def _sigmoid(x):
    return torch.sigmoid(x)
def _layernorm(x, axis=-1, eps=1e-5):
    m = x.mean(dim=axis, keepdim=True)
    v = x.var(dim=axis, keepdim=True, unbiased=False)
    return (x - m) / torch.sqrt(v + eps)
def _scatter_add(tgt, idx, src, axis=0):
    return tgt.clone().index_add_(axis, idx, src)
def _segment_sum(src, seg, n):
    out = torch.zeros((n,) + src.shape[1:], dtype=src.dtype)
    return out.index_add_(0, seg, src)
def _pad(x, pw):
    flat = tuple(v for pair in reversed(pw) for v in pair)
    return torch.nn.functional.pad(x, flat)

kernel_name = 'standalone__sliding_block_cached__sampling'

def setup_inputs():

    _w = (lambda a: (lambda t: t.to(torch.bfloat16) if t.is_floating_point() else t)(torch.as_tensor(a)))
    B, Sq, D = 32, 1, 1024
    Hq, Hkv, Sk, Dh = 32, 4, 2048, 128
    assert Hq % Hkv == 0, (Hq, Hkv)
    return {
        "x": _w((lambda *s: torch.randn(*s, dtype=torch.bfloat16) * 0.8)(B, Sq, D)),
        "k_cache": _w((lambda *s: torch.randn(*s, dtype=torch.bfloat16) * 0.8)(B, Hkv, Sk, Dh)),
        "v_cache": _w((lambda *s: torch.randn(*s, dtype=torch.bfloat16) * 0.05)(B, Hkv, Sk, Dh)),
        "wq": _w((lambda *s: torch.randn(*s, dtype=torch.bfloat16) * 0.8)(D, Hq * Dh) * (D ** -0.5)),
        "wo": _w((lambda *s: torch.randn(*s, dtype=torch.bfloat16) * 0.05)(Hq * Dh, D) * ((Hq * Dh) ** -0.5)),
    }

def reference(x, k_cache, v_cache, wq, wo):
    B, Sq, D = x.shape
    Hq, Dh = 32, 128
    Hkv, Sk = k_cache.shape[1], k_cache.shape[2]
    W = min(4096, max(256, Sk // 4))
    rep = Hq // Hkv
    q = (lambda x, *d: x.permute(*d))((x @ wq).reshape(B, Sq, Hq, Dh), 0, 2, 1, 3)
    k = (lambda x, n, axis: torch.repeat_interleave(x, n, dim=axis))(k_cache[:, :, Sk - W:, :], rep, axis=1)
    v = (lambda x, n, axis: torch.repeat_interleave(x, n, dim=axis))(v_cache[:, :, Sk - W:, :], rep, axis=1)
    scores = torch.einsum("bhqd,bhkd->bhqk", q, k) * (Dh ** -0.5)
    p = _softmax(scores, axis=-1)
    o = torch.einsum("bhqk,bhkd->bhqd", p, v)
    return (lambda x, *d: x.permute(*d))(o, 0, 2, 1, 3).reshape(B, Sq, Hq * Dh) @ wo
```

```python
class Asm:
    def __init__(self):
        self.lines = []
        self.lbl = 0
    def __call__(self, s=""):
        for ln in s.split("\n"):
            self.lines.append(ln)
    def label(self, name):
        self.lines.append(name + ":")
    def newlabel(self, base="L"):
        self.lbl += 1
        return f"{base}_{self.lbl}"
    def text(self):
        out = []
        for ln in self.lines:
            t = ln.strip()
            if not t:
                continue
            if t.endswith(":") or t.startswith(".") or t.startswith(";"):
                out.append(t if not t.startswith(".amdhsa_") else "  " + t)
            else:
                out.append("    " + t)
        return "\n".join(out) + "\n"

def vr(base, n=1):
    return f"v{base}" if n == 1 else f"v[{base}:{base+n-1}]"
def ar(base, n=1):
    return f"a{base}" if n == 1 else f"a[{base}:{base+n-1}]"
def sr(base, n=1):
    return f"s{base}" if n == 1 else f"s[{base}:{base+n-1}]"

def srd(a, dst, ptr, nbytes):
    a(f"s_mov_b32 s{dst}, s{ptr}")
    a(f"s_and_b32 s{dst+1}, s{ptr+1}, 0xffff")
    a(f"s_mov_b32 s{dst+2}, {nbytes}")
    a(f"s_mov_b32 s{dst+3}, 0x00020000")

def kernel_header(a, name):
    a(f".globl {name}")
    a(".p2align 8")
    a(f".type {name},@function")
    a.label(name)

def kernel_desc(a, name, vgpr, sgpr=102, accum=None):
    if accum is None:
        accum = min(256, (vgpr + 3) // 4 * 4)
    a(".p2align 6")
    a(f".amdhsa_kernel {name}")
    a(f".amdhsa_next_free_vgpr {vgpr}")
    a(f".amdhsa_next_free_sgpr {sgpr}")
    a(f".amdhsa_accum_offset {accum}")
    a(".amdhsa_group_segment_fixed_size 0")
    a(".amdhsa_kernarg_size 64")
    a(".amdhsa_user_sgpr_count 2")
    a(".amdhsa_user_sgpr_kernarg_segment_ptr 1")
    a(".amdhsa_system_sgpr_workgroup_id_x 1")
    a(".amdhsa_float_denorm_mode_32 3")
    a(".end_amdhsa_kernel")

HEADER = """; Kernarg layout for this problem (64 bytes, ptrs only, base s[0:1]):
"""
```

```python
from asmlib import *
import sys
a = Asm()
PART = 0; QBUF = 8 << 20; OBUF = 9 << 20
WS = 268435456

def gemm(name, is_q):
    N = 4096 if is_q else 1024
    K = 1024 if is_q else 4096
    NT = N // 128
    ldw = N * 2; lda = K * 2
    kernel_header(a, name)
    a("s_cmp_ge_u32 s2, 256"); a(f"s_cbranch_scc1 {name}_done")
    a("s_load_dwordx2 s[4:5], s[0:1], 0")
    a(f"s_load_dwordx2 s[6:7], s[0:1], {24 if is_q else 32}")
    a("s_load_dwordx2 s[8:9], s[0:1], 56")
    a("v_lshrrev_b32 v1, 6, v0")
    a("s_nop 0")
    a("v_readfirstlane_b32 s10, v1")
    a("v_and_b32 v1, 63, v0")
    a("v_and_b32 v2, 15, v1")
    a("v_lshrrev_b32 v3, 4, v1")
    a(f"s_and_b32 s11, s2, {NT-1}")
    a(f"s_lshr_b32 s12, s2, {NT.bit_length()-1}")
    a("s_waitcnt lgkmcnt(0)")
    if is_q:
        srd(a, 16, 4, 32*1024*2)
    else:
        a(f"s_add_u32 s4, s8, {OBUF}"); a("s_addc_u32 s5, s9, 0")
        srd(a, 16, 4, 32*4096*2)
    srd(a, 20, 6, K*N*2)
    srd(a, 24, 8, 8 << 20)
    a("s_lshl_b32 s13, s11, 7"); a("s_lshl_b32 s14, s10, 5"); a("s_add_u32 s13, s13, s14")
    a("s_lshl_b32 s14, s12, 7")
    a("v_lshlrev_b32 v4, 3, v3"); a("v_add_u32 v4, s14, v4"); a(f"v_lshlrev_b32 v4, {ldw.bit_length()-1}, v4")
    a("v_lshlrev_b32 v5, 1, v2"); a("v_add_u32 v5, s13, v5"); a("v_lshlrev_b32 v5, 1, v5"); a("v_add_u32 v4, v4, v5")
    a(f"v_lshlrev_b32 v6, {lda.bit_length()-1}, v2")
    a("v_lshlrev_b32 v7, 3, v3"); a("v_add_u32 v7, s14, v7"); a("v_lshlrev_b32 v7, 1, v7"); a("v_add_u32 v6, v6, v7")
    WR = 16
    XR = 48
    for s in range(4):
        for e in range(8):
            a(f"s_mov_b32 s28, {(32*s+e)*ldw}")
            a(f"buffer_load_dword v{WR+8*s+e}, v4, s[20:23], s28 offen")
    a(f"s_mov_b32 s29, {16*lda}")
    for s in range(4):
        a(f"buffer_load_dwordx4 {vr(XR+8*s,4)}, v6, s[16:19], 0 offen offset:{64*s}")
        a(f"buffer_load_dwordx4 {vr(XR+8*s+4,4)}, v6, s[16:19], s29 offen offset:{64*s}")
    ACC = 80
    for r in range(16): a(f"v_mov_b32 v{ACC+r}, 0")
    a("s_mov_b32 s30, 0x05040100"); a("s_mov_b32 s31, 0x07060302")
    a("s_waitcnt vmcnt(0)")
    FR = 96
    for s in range(4):
        for t in range(2):
            for q in range(4):
                a(f"v_perm_b32 v{FR+4*t+q}, v{WR+8*s+2*q+1}, v{WR+8*s+2*q}, s{30+t}")
        a("s_nop 1")
        for t in range(2):
            for bt in range(2):
                a(f"v_mfma_f32_16x16x32_bf16 {vr(ACC+8*t+4*bt,4)}, {vr(FR+4*t,4)}, {vr(XR+8*s+4*bt,4)}, {vr(ACC+8*t+4*bt,4)}")
        a("s_nop 7")
    a("s_nop 7")
    a("s_lshl_b32 s14, s12, 5")
    a("v_add_u32 v8, s14, v2"); a(f"v_lshlrev_b32 v8, {(N*4).bit_length()-1}, v8")
    a("v_lshlrev_b32 v9, 3, v3"); a("v_add_u32 v9, s13, v9"); a("v_lshlrev_b32 v9, 2, v9"); a("v_add_u32 v8, v8, v9")
    a(f"s_mov_b32 s29, {16*N*4}")
    T = 104
    for bt in range(2):
        for r in range(4):
            for t in range(2):
                a(f"v_mov_b32 v{T+2*r+t}, v{ACC+8*t+4*bt+r}")
        so = "0" if bt == 0 else "s29"
        a(f"buffer_store_dwordx4 {vr(T,4)}, v8, s[24:27], {so} offen")
        a(f"buffer_store_dwordx4 {vr(T+4,4)}, v8, s[24:27], {so} offen offset:16")
        a("s_nop 1")
    a.label(f"{name}_done")
    a("s_endpgm")

def reduce(name, is_q):
    N = 4096 if is_q else 1024
    S = 8 if is_q else 32
    nwg = 32 * N // 2 // 256
    kernel_header(a, name)
    a(f"s_cmp_ge_u32 s2, {nwg}"); a(f"s_cbranch_scc1 {name}_done")
    a("s_load_dwordx2 s[8:9], s[0:1], 56")
    a("s_load_dwordx2 s[6:7], s[0:1], 40")
    a("s_lshl_b32 s3, s2, 8"); a("v_add_u32 v1, s3, v0")
    a("v_lshlrev_b32 v2, 3, v1")
    a("v_lshlrev_b32 v3, 2, v1")
    a("s_waitcnt lgkmcnt(0)")
    srd(a, 24, 8, 8 << 20)
    if is_q:
        a(f"s_add_u32 s6, s8, {QBUF}"); a("s_addc_u32 s7, s9, 0")
    srd(a, 16, 6, 32*N*2)
    for s in range(S):
        a(f"s_mov_b32 s28, {s*32*N*4}")
        a(f"buffer_load_dwordx2 {vr(8+2*s,2)}, v2, s[24:27], s28 offen")
    a("s_waitcnt vmcnt(0)")
    for s in range(1, S):
        a(f"v_add_f32 v8, v8, v{8+2*s}"); a(f"v_add_f32 v9, v9, v{9+2*s}")
    a("v_cvt_pk_bf16_f32 v4, v8, v9")
    a("buffer_store_dword v4, v3, s[16:19], 0 offen")
    a.label(f"{name}_done")
    a("s_endpgm")

def attn(name):
    kernel_header(a, name)
    a("s_cmp_ge_u32 s2, 128"); a(f"s_cbranch_scc1 {name}_done")
    a("s_load_dwordx2 s[4:5], s[0:1], 8")
    a("s_load_dwordx2 s[6:7], s[0:1], 16")
    a("s_load_dwordx2 s[8:9], s[0:1], 56")
    a("v_lshrrev_b32 v1, 6, v0"); a("s_nop 0"); a("v_readfirstlane_b32 s10, v1")
    a("v_and_b32 v1, 63, v0"); a("v_and_b32 v2, 15, v1"); a("v_lshrrev_b32 v3, 4, v1")
    a("s_lshr_b32 s11, s2, 2"); a("s_and_b32 s12, s2, 3")
    a("s_waitcnt lgkmcnt(0)")
    srd(a, 16, 4, 32*4*2048*128*2)
    srd(a, 20, 6, 32*4*2048*128*2)
    a(f"s_add_u32 s4, s8, {QBUF}"); a("s_addc_u32 s5, s9, 0"); srd(a, 24, 4, 32*4096*2)
    a(f"s_add_u32 s4, s8, {OBUF}"); a("s_addc_u32 s5, s9, 0"); srd(a, 28, 4, 32*4096*2)
    a("s_lshl_b32 s13, s2, 11"); a("s_lshl_b32 s14, s10, 6"); a("s_add_u32 s13, s13, s14"); a("s_add_u32 s13, s13, 1536")
    a("s_lshl_b32 s13, s13, 8")
    a("v_and_b32 v4, 7, v2"); a("s_lshl_b32 s14, s12, 3"); a("v_add_u32 v4, s14, v4"); a("v_lshlrev_b32 v4, 8, v4")
    a("v_lshlrev_b32 v5, 4, v3"); a("v_add_u32 v4, v4, v5"); a("s_lshl_b32 s14, s11, 13"); a("v_add_u32 v4, s14, v4")
    QR = 16
    for s in range(4):
        a(f"buffer_load_dwordx4 {vr(QR+4*s,4)}, v4, s[24:27], 0 offen offset:{64*s}")
    a("v_lshlrev_b32 v6, 8, v2"); a("v_add_u32 v6, v6, v5")
    a("v_lshlrev_b32 v7, 10, v3"); a("v_lshlrev_b32 v8, 4, v2"); a("v_add_u32 v7, v7, v8")
    KR = 32; VR = 96
    for ti in range(4):
        a(f"s_add_u32 s14, s13, {ti*4096}")
        for s in range(4):
            a(f"buffer_load_dwordx4 {vr(KR+16*ti+4*s,4)}, v6, s[16:19], s14 offen offset:{64*s}")
    for u in range(2):
        for e in range(8):
            if e % 4 == 0: a(f"s_add_u32 s14, s13, {u*8192 + (e//4)*4096}")
            a(f"buffer_load_dwordx4 {vr(VR+32*u+4*e,4)}, v7, s[20:23], s14 offen offset:{(e%4)*256}")
    SC = 160
    for r in range(16): a(f"v_mov_b32 v{SC+r}, 0")
    a("s_waitcnt vmcnt(16)")
    for ti in range(4):
        for s in range(4):
            a(f"v_mfma_f32_16x16x32_bf16 {vr(SC+4*ti,4)}, {vr(KR+16*ti+4*s,4)}, {vr(QR+4*s,4)}, {vr(SC+4*ti,4)}")
    a("s_nop 7"); a("s_nop 3")
    a(f"v_max3_f32 v9, v{SC}, v{SC+1}, v{SC+2}")
    for r in range(3, 15, 2):
        a(f"v_max3_f32 v9, v9, v{SC+r}, v{SC+r+1}")
    a(f"v_max_f32 v9, v9, v{SC+15}")
    def xred(op, reg):
        a(f"v_mov_b32 v10, v{reg}"); a("s_nop 1")
        a(f"v_permlane16_swap_b32 v{reg}, v10"); a("s_nop 1")
        a(f"{op} v{reg}, v{reg}, v10")
        a(f"v_mov_b32 v10, v{reg}"); a("s_nop 1")
        a(f"v_permlane32_swap_b32 v{reg}, v10"); a("s_nop 1")
        a(f"{op} v{reg}, v{reg}, v10")
    xred("v_max_f32", 9)
    a("v_lshlrev_b32 v11, 5, v2"); a("s_lshl_b32 s14, s10, 2"); a("v_add_u32 v12, s14, v11")
    a("ds_write_b32 v12, v9")
    a("s_waitcnt lgkmcnt(0)"); a("s_barrier")
    a("ds_read_b128 v[176:179], v11"); a("ds_read_b128 v[180:183], v11 offset:16")
    a("s_waitcnt lgkmcnt(0)")
    a("v_max3_f32 v9, v176, v177, v178"); a("v_max3_f32 v9, v9, v179, v180"); a("v_max3_f32 v9, v9, v181, v182"); a("v_max_f32 v9, v9, v183")
    import math
    c = (128 ** -0.5) * math.log2(math.e)
    import struct
    cb = struct.unpack("<I", struct.pack("<f", c))[0]
    a(f"s_mov_b32 s15, {hex(cb)}")
    a("v_mul_f32 v9, s15, v9")
    for r in range(16):
        a(f"v_fma_f32 v{SC+r}, v{SC+r}, s15, -v9")
    for r in range(16):
        a(f"v_exp_f32 v{SC+r}, v{SC+r}")
    a("s_nop 0")
    a(f"v_add_f32 v13, v{SC}, v{SC+1}")
    for r in range(2, 16): a(f"v_add_f32 v13, v13, v{SC+r}")
    xred("v_add_f32", 13)
    a("ds_write_b32 v12, v13 offset:512")
    PR = 176
    for u in range(2):
        for h in range(2):
            a(f"v_cvt_pk_bf16_f32 v{PR+4*u+2*h}, v{SC+8*u+4*h}, v{SC+8*u+4*h+1}")
            a(f"v_cvt_pk_bf16_f32 v{PR+4*u+2*h+1}, v{SC+8*u+4*h+2}, v{SC+8*u+4*h+3}")
    ACC = 192
    for r in range(32): a(f"v_mov_b32 v{ACC+r}, 0")
    a("s_mov_b32 s34, 0x05040100"); a("s_mov_b32 s35, 0x07060302")
    a("s_waitcnt vmcnt(0)")
    FR = 224
    for u in range(2):
        for t in range(8):
            f = FR + 4 * (t % 2)
            for q in range(4):
                a(f"v_perm_b32 v{f+q}, v{VR+32*u+4*(2*q+1)+(t>>1)}, v{VR+32*u+4*(2*q)+(t>>1)}, s{34+(t&1)}")
            a("s_nop 1")
            a(f"v_mfma_f32_16x16x32_bf16 {vr(ACC+4*t,4)}, {vr(f,4)}, {vr(PR+4*u,4)}, {vr(ACC+4*t,4)}")
            a("s_nop 3")
    a("s_nop 7"); a("s_nop 3")
    a("v_lshlrev_b32 v14, 3, v3"); a("v_add_u32 v14, v14, v2"); a("s_lshl_b32 s14, s10, 10"); a("v_add_u32 v14, s14, v14")
    a("v_lshlrev_b32 v14, 2, v14")
    a("v_cmp_gt_u32 vcc, 8, v2"); a("s_and_saveexec_b64 s[36:37], vcc")
    for r in range(4):
        for t in range(8):
            a(f"ds_write_b32 v14, v{ACC+4*t+r} offset:{1024 + (8*r+t)*128}")
    a("s_mov_b64 exec, s[36:37]")
    a("s_waitcnt lgkmcnt(0)"); a("s_barrier")
    a("v_and_b32 v4, 7, v0"); a("v_bfe_u32 v5, v0, 3, 2"); a("v_lshrrev_b32 v6, 5, v0")
    a("v_lshlrev_b32 v7, 6, v6"); a("v_lshl_add_u32 v7, v5, 3, v7"); a("v_add_u32 v7, v7, v4"); a("v_lshlrev_b32 v7, 2, v7")
    for w in range(8):
        a(f"ds_read_b32 v{16+2*w}, v7 offset:{1024 + w*4096}")
        a(f"ds_read_b32 v{17+2*w}, v7 offset:{1024 + w*4096 + 128}")
    a("v_lshlrev_b32 v8, 5, v4")
    a("ds_read_b128 v[32:35], v8 offset:512"); a("ds_read_b128 v[36:39], v8 offset:528")
    a("s_waitcnt lgkmcnt(0)")
    for w in range(1, 8):
        a(f"v_add_f32 v16, v16, v{16+2*w}"); a(f"v_add_f32 v17, v17, v{17+2*w}")
    for r in range(33, 40): a(f"v_add_f32 v32, v32, v{r}")
    a("v_rcp_f32 v32, v32"); a("s_nop 0")
    a("v_mul_f32 v16, v16, v32"); a("v_mul_f32 v17, v17, v32")
    a("v_cvt_pk_bf16_f32 v16, v16, v17")
    a("s_lshl_b32 s14, s12, 3"); a("v_add_u32 v9, s14, v4"); a("v_lshlrev_b32 v9, 8, v9")
    a("v_lshl_add_u32 v9, v5, 6, v9"); a("v_lshl_add_u32 v9, v6, 2, v9"); a("s_lshl_b32 s14, s11, 13"); a("v_add_u32 v9, s14, v9")
    a("buffer_store_dword v16, v9, s[28:31], 0 offen")
    a.label(f"{name}_done")
    a("s_endpgm")

hdr = HEADER + """; @launch kernel=gemmq_kernel grid=(256,1,1) block=(256,1,1) lds=0
; @launch kernel=redq_kernel grid=(256,1,1) block=(256,1,1) lds=0
; @launch kernel=attn_kernel grid=(128,1,1) block=(512,1,1) lds=33792
; @launch kernel=gemmo_kernel grid=(256,1,1) block=(256,1,1) lds=0
; @launch kernel=redo_kernel grid=(64,1,1) block=(256,1,1) lds=0
"""
a('.amdgcn_target "amdgcn-amd-amdhsa--gfx950"')
a(".text")
gemm("gemmq_kernel", True)
reduce("redq_kernel", True)
attn("attn_kernel")
gemm("gemmo_kernel", False)
reduce("redo_kernel", False)
a('.section .rodata,"a"')
kernel_desc(a, "gemmq_kernel", 112)
kernel_desc(a, "redq_kernel", 80)
kernel_desc(a, "attn_kernel", 232)
kernel_desc(a, "gemmo_kernel", 112)
kernel_desc(a, "redo_kernel", 80)
open(sys.argv[1], "w").write(hdr + a.text())
```
